```python
import torch

def _softmax(x, axis=-1):
    return torch.softmax(x, dim=axis)
def _gelu(x):
    return torch.nn.functional.gelu(x, approximate="tanh")
def _silu(x):
    return torch.nn.functional.silu(x)
def _sigmoid(x):
    return torch.sigmoid(x)
def _layernorm(x, axis=-1, eps=1e-5):
    m = x.mean(dim=axis, keepdim=True)
    v = x.var(dim=axis, keepdim=True, unbiased=False)
    return (x - m) / torch.sqrt(v + eps)
def _scatter_add(tgt, idx, src, axis=0):
    return tgt.clone().index_add_(axis, idx, src)
def _segment_sum(src, seg, n):
    out = torch.zeros((n,) + src.shape[1:], dtype=src.dtype)
    return out.index_add_(0, seg, src)
def _pad(x, pw):
    flat = tuple(v for pair in reversed(pw) for v in pair)
    return torch.nn.functional.pad(x, flat)

kernel_name = 'parallel_sum__sliding_block_cached__dense_activation_silu__decode'

def setup_inputs():

    _w = (lambda a: (lambda t: t.to(torch.bfloat16) if t.is_floating_point() else t)(torch.as_tensor(a)))
    def _A_setup():
        B, Sq, D = 4, 1, 576
        Hq, Hkv, Sk, Dh = 32, 16, 8192, 128
        assert Hq % Hkv == 0, (Hq, Hkv)
        return {
            "x": _w((lambda *s: torch.randn(*s, dtype=torch.bfloat16) * 0.05)(B, Sq, D)),
            "k_cache": _w((lambda *s: torch.randn(*s, dtype=torch.bfloat16) * 3.2)(B, Hkv, Sk, Dh)),
            "v_cache": _w((lambda *s: torch.randn(*s, dtype=torch.bfloat16) * 0.8)(B, Hkv, Sk, Dh)),
            "wq": _w((lambda *s: torch.randn(*s, dtype=torch.bfloat16) * 3.2)(D, Hq * Dh) * (D ** -0.5)),
            "wo": _w((lambda *s: torch.randn(*s, dtype=torch.bfloat16) * 0.8)(Hq * Dh, D) * ((Hq * Dh) ** -0.5)),
        }
    _A_in = _A_setup()

    def _B_setup():
        B, S, D, F = 4, 1, 576, 4608
        return {
            "x": _w((lambda *s: torch.randn(*s, dtype=torch.bfloat16) * 0.05)(B, S, D)),
            "w1": _w((lambda *s: torch.randn(*s, dtype=torch.bfloat16) * 3.2)(D, F) * (D ** -0.5)),
            "w2": _w((lambda *s: torch.randn(*s, dtype=torch.bfloat16) * 0.4)(F, D) * (F ** -0.5)),
        }
    _B_in = _B_setup()

    return {
        "A_x": _A_in["x"],
        "A_k_cache": _A_in["k_cache"],
        "A_v_cache": _A_in["v_cache"],
        "A_wq": _A_in["wq"],
        "A_wo": _A_in["wo"],
        "B_x": _B_in["x"],
        "B_w1": _B_in["w1"],
        "B_w2": _B_in["w2"],
    }

def reference(A_x, A_k_cache, A_v_cache, A_wq, A_wo, B_x, B_w1, B_w2):
    def _A_ref(x, k_cache, v_cache, wq, wo):
        B, Sq, D = x.shape
        Hq, Dh = 32, 128
        Hkv, Sk = k_cache.shape[1], k_cache.shape[2]
        W = min(4096, max(256, Sk // 4))
        rep = Hq // Hkv
        q = (lambda x, *d: x.permute(*d))((x @ wq).reshape(B, Sq, Hq, Dh), 0, 2, 1, 3)
        k = (lambda x, n, axis: torch.repeat_interleave(x, n, dim=axis))(k_cache[:, :, Sk - W:, :], rep, axis=1)
        v = (lambda x, n, axis: torch.repeat_interleave(x, n, dim=axis))(v_cache[:, :, Sk - W:, :], rep, axis=1)
        scores = torch.einsum("bhqd,bhkd->bhqk", q, k) * (Dh ** -0.5)
        p = _softmax(scores, axis=-1)
        o = torch.einsum("bhqk,bhkd->bhqd", p, v)
        return (lambda x, *d: x.permute(*d))(o, 0, 2, 1, 3).reshape(B, Sq, Hq * Dh) @ wo

    def _B_ref(x, w1, w2):
        h = torch.einsum("bsd,df->bsf", x, w1)
        h = _silu(h)
        out = torch.einsum("bsf,fd->bsd", h, w2)
        return out

    x = A_x
    xn = _layernorm(x, axis=-1)
    return x + _A_ref(xn, A_k_cache, A_v_cache, A_wq, A_wo) + _B_ref(xn, B_w1, B_w2)
```

```python
import re

TRANS = ('v_exp_f32', 'v_log_f32', 'v_rcp_f32', 'v_rsq_f32', 'v_sqrt_f32', 'v_sin_f32', 'v_cos_f32', 'v_rcp_iflag_f32')

def regs(tok):
    t = tok.strip()
    t = t.lstrip('-')
    m = re.match(r'^(?:abs\(|\|)(.*?)(?:\)|\|)$', t)
    if m: t = m.group(1)
    m = re.match(r'^([vsa])(\d+)$', t)
    if m: return {(m.group(1), int(m.group(2)))}
    m = re.match(r'^([vsa])\[(\d+):(\d+)\]$', t)
    if m: return {(m.group(1), i) for i in range(int(m.group(2)), int(m.group(3)) + 1)}
    if t == 'vcc': return {('s', 'vcc_lo'), ('s', 'vcc_hi')}
    if t in ('vcc_lo', 'vcc_hi', 'm0', 'exec_lo', 'exec_hi'): return {('s', t)}
    if t == 'exec': return {('s', 'exec_lo'), ('s', 'exec_hi')}
    return set()

class Ins:
    def __init__(self, text):
        self.text = text
        body = text.split(';')[0].strip()
        self.label = None; self.op = None; self.directive = False
        if body.endswith(':'):
            self.label = body[:-1]; return
        if not body or body.startswith('.'):
            self.directive = True; return
        parts = body.split(None, 1)
        self.op = op = parts[0]
        rest = parts[1] if len(parts) > 1 else ''
        ops = [o.strip() for o in re.split(r',(?![^\[]*\])', rest)] if rest else []
        mods = ''
        if ops:
            sp = ops[-1].split(None, 1)
            ops[-1] = sp[0]
            mods = sp[1] if len(sp) > 1 else ''
        self.ops = ops; self.mods = mods
        R = [regs(o) for o in ops]
        U = lambda l: set().union(*l) if l else set()
        self.mfma = op.startswith('v_mfma')
        self.valu = op.startswith('v_') and not self.mfma
        self.salu = op.startswith('s_')
        self.vmem = op.startswith(('buffer_', 'global_'))
        self.ds = op.startswith('ds_')
        self.dpp = '_dpp' in op
        self.trans = op.replace('_e32', '').replace('_e64', '') in TRANS
        self.dot = op.startswith('v_dot')
        self.perml = op.startswith('v_permlane')
        self.rdlane = op.startswith(('v_readfirstlane', 'v_readlane'))
        self.ldsdma = self.vmem and re.search(r'\blds\b', mods) is not None
        self.defs = set(); self.uses = set(); self.data = set(); self.wide_store = False
        if self.mfma:
            self.defs = R[0]; self.A = R[1]; self.B = R[2]; self.C = R[3]; self.uses = R[1] | R[2] | R[3]
            self.passes = 8 if '32x32' in op else 4
        elif self.perml:
            self.defs = R[0] | R[1]; self.uses = R[0] | R[1]
        elif self.valu:
            if re.match(r'v_(add|sub|subrev|addc|subb)_co', op):
                self.defs = R[0] | R[1]; self.uses = U(R[2:])
            else:
                self.defs = R[0]; self.uses = U(R[1:])
            if op.startswith(('v_fmac', 'v_dot2c', 'v_pk_fmac', 'v_writelane')) or self.dpp: self.uses |= R[0]
        elif self.ds:
            if op.startswith(('ds_read', 'ds_bpermute', 'ds_swizzle', 'ds_permute')) or '_rtn' in op:
                self.defs = R[0]; self.uses = U(R[1:])
            else: self.uses = U(R)
        elif self.vmem:
            if 'load' in op:
                if self.ldsdma: self.uses = U(R) | {('s', 'm0')}
                else: self.defs = R[0]; self.uses = U(R[1:])
            elif 'store' in op:
                self.uses = U(R)
                self.data = R[0] if op.startswith('buffer') else R[1]
                self.wide_store = op.endswith(('x3', 'x4'))
            else:
                self.uses = U(R)
                if 'sc0' in mods: self.defs = R[0]
        elif self.salu:
            if op.startswith(('s_cmp', 's_bitcmp', 's_cbranch', 's_branch', 's_waitcnt', 's_nop', 's_sleep', 's_barrier', 's_endpgm', 's_setprio')):
                self.uses = U(R)
            else:
                self.defs = R[0] if R else set(); self.uses = U(R[1:])
        self.target = ops[0] if op.startswith(('s_cbranch', 's_branch')) else None
        self.states = int(ops[0], 0) + 1 if op == 's_nop' else 1

def need(p, c):
    n = 0
    vd = {r for r in p.defs if r[0] in 'va'}
    sd = {r for r in p.defs if r[0] == 's'}
    if p.valu:
        if vd & c.uses:
            if c.dpp: n = max(n, 2)
            if c.rdlane: n = max(n, 1)
            if c.perml: n = max(n, 2)
            if c.mfma: n = max(n, 2)
            if p.trans and (c.valu or c.mfma): n = max(n, 1)
        if p.dot and (vd & (c.uses | c.defs)) and (c.valu or c.mfma or c.vmem or c.ds):
            n = max(n, 3 if c.op != p.op else 0)
        if sd & c.uses:
            if c.valu: n = max(n, 4 if c.rdlane else 2)
            if c.vmem: n = max(n, 5)
    if p.mfma:
        big = 8 if p.passes == 4 else 12
        if c.mfma:
            if vd & (c.A | c.B): n = max(n, big)
            if vd & c.C and not (vd == c.C and p.passes == c.passes): n = max(n, big - 2)
            if vd & c.defs and not (vd & c.C): n = max(n, big - 2)
        elif (c.valu or c.vmem or c.ds) and vd & (c.uses | c.defs): n = max(n, big)
        if c.valu and (p.C & c.defs): n = max(n, 3 if p.passes == 4 else 7)
    if p.salu and ('s', 'm0') in p.defs and c.ldsdma: n = max(n, 1)
    if p.vmem and p.wide_store and (p.data & c.defs): n = max(n, 2)
    return n

class Asm:
    def __init__(self): self.L = []
    def __call__(self, s):
        for l in s.split('\n'):
            l = l.strip()
            if l: self.L.append(l)
    def pad(self, verbose=False):
        ins = [Ins(l) for l in self.L]
        total = 0
        i = 0
        while i < len(ins):
            c = ins[i]
            if c.op is None: i += 1; continue
            srcs = {}
            for k, x in enumerate(ins):
                if x.op and x.target: srcs.setdefault(x.target, []).append(k)
            worst = 0
            stack = [(i - 1, 0, True)]
            seen = set()
            while stack:
                k, dist, fall = stack.pop()
                if k < 0 or dist >= 20 or (k, dist, fall) in seen: continue
                seen.add((k, dist, fall))
                x = ins[k]
                if x.label:
                    for b in srcs.get(x.label, []): stack.append((b, dist, False))
                    stack.append((k - 1, dist, True)); continue
                if x.op is None:
                    stack.append((k - 1, dist, True)); continue
                if fall and x.op in ('s_branch', 's_endpgm'): continue
                worst = max(worst, need(x, c) - dist)
                stack.append((k - 1, dist + x.states, True))
            if worst > 0:
                if verbose: print('pad', worst, 'before', c.text)
                total += worst
                ins.insert(i, Ins(f's_nop {worst-1}')); i += 1
            i += 1
        self.L = [x.text for x in ins]
        return total
    def text(self):
        out = []
        for l in self.L:
            out.append(l if (l.endswith(':') or l.startswith(('.', ';'))) else '  ' + l)
        return '\n'.join(out) + '\n'
```

```python
import sys
from asmlib import Asm
NAME = 'parallel_sum__sliding_block_cached__dense_activation_silu__decode'

FB = 0x400
AB = 0x1000
SB = 0x8000
QB = 0x10000
HB = 0x50000
OB = 0x90000
WSZ = 0xD0000
STAMP = 0x100000
LWQ = 0
LW1 = 18432
LL = LW1 + 24576
LXN = LL + 49152
XS = 1184
LQ = LXN + 4 * XS
LFL = LQ + 512
LST = LFL + 64
LO = LST + 128
LP = LO + 8192
LDS = LP + 6144
LOG2E = 0x3FB8AA3B
SCALE = 0x3DB504F3
DPPF = 'row_mask:0xf bank_mask:0xf'

def gen(stamps=0, rot=1024, spinmax=200000, opol='sc1', late_h=1, vg=168):
    a = Asm()
    nst = [0]
    def stamp(i):
        if stamps: a(f's_memrealtime s[{64+2*i}:{65+2*i}]')
    a(f'; @launch grid=(256,1,1) block=(768,1,1) lds={LDS}')
    a('.amdgcn_target "amdgcn-amd-amdhsa--gfx950"')
    a('.text')
    a(f'.globl {NAME}_kernel')
    a('.p2align 8')
    a(f'.type {NAME}_kernel,@function')
    a(f'{NAME}_kernel:')
    a('s_cmp_ge_u32 s2, 256')
    a('s_cbranch_scc1 L_exit')
    if stamps:
        for i in range(8): a(f's_mov_b32 s{64+2*i}, 0')
    stamp(0)
    a('''
    s_load_dwordx16 s[4:19], s[0:1], 0
    s_load_dwordx2 s[20:21], s[0:1], 64
    s_load_dwordx2 s[24:25], s[0:1], 80
    v_lshrrev_b32 v1, 6, v0
    v_and_b32 v0, 63, v0
    v_readfirstlane_b32 s3, v1
    s_and_b32 s28, s2, 7
    s_lshr_b32 s29, s2, 3
    s_lshl_b32 s30, s28, 5
    s_add_u32 s29, s29, s30
    s_lshr_b32 s30, s29, 4
    s_and_b32 s31, s29, 15
    v_lshlrev_b32 v2, 4, v0
    s_mov_b32 s26, %d
    s_mov_b32 s27, 0x20000
    s_mov_b32 s22, 4608
    s_mov_b32 s23, 0x20000
    ''' % (WSZ if not stamps else 0x200000))
    a('''
    s_mul_i32 s35, s30, 7
    s_add_u32 s35, s35, s31
    s_sub_u32 s35, s35, 9
    s_mul_i32 s34, s35, 7282
    s_lshr_b32 s34, s34, 16
    s_mul_i32 s33, s34, 9
    s_sub_u32 s33, s35, s33
    s_cmp_lt_u32 s35, 108
    s_cselect_b32 s32, 6, 0
    s_cmp_lt_u32 s31, 9
    s_cselect_b32 s32, 4, s32
    s_cselect_b32 s33, s31, s33
    s_cmp_lg_u32 s3, 0
    s_cbranch_scc1 L_noinit
    v_lshlrev_b32 v3, 2, v0
    v_add_u32 v3, %d, v3
    v_mov_b32 v4, 0
    s_mov_b64 exec, 0xffff
    ds_write_b32 v3, v4
    s_mov_b64 exec, -1
    s_waitcnt lgkmcnt(0)
    L_noinit:
    s_barrier
    s_cmp_lt_u32 s3, 4
    s_cbranch_scc1 L_aux
    ''' % LFL)
    def nonce():
        a('''
        s_add_u32 s58, s58, 0x9E3779B9
        s_and_b32 s60, s58, 0xff
        s_bfe_u32 s61, s58, 0x80008
        s_bfe_u32 s62, s58, 0x80010
        s_lshr_b32 s63, s58, 24
        ''')
    def spin(lbl):
        a(f'''
        s_add_u32 s59, s59, 1
        s_cmp_gt_u32 s59, {spinmax}
        s_cbranch_scc1 L_exit
        ''')
    K0 = 8; V0 = 72; QR = 136; MK = 140; ACC = 144
    a(f'''
    s_setprio 1
    s_lshr_b32 s36, s31, 2
    s_lshl_b32 s36, s36, 25
    s_lshl_b32 s37, s30, 21
    s_add_u32 s36, s36, s37
    s_and_b32 s37, s31, 3
    s_lshl_b32 s37, s37, 17
    s_add_u32 s36, s36, s37
    s_add_u32 s36, s36, {6144*256}
    s_and_b32 s37, s3, 3
    s_lshl_b32 s37, s37, 12
    s_lshr_b32 s38, s3, 3
    s_lshl_b32 s38, s38, 16
    s_add_u32 s37, s37, s38
    s_mul_i32 s38, s2, {rot}
    s_add_u32 s37, s37, s38
    v_bfe_u32 v3, v0, 2, 2
    v_lshlrev_b32 v3, 8, v3
    v_lshrrev_b32 v4, 4, v0
    v_lshlrev_b32 v4, 6, v4
    v_and_b32 v5, 3, v0
    v_lshl_add_u32 v4, v5, 4, v4
    v_add_u32 v3, v3, v4
    s_waitcnt lgkmcnt(0)
    s_add_u32 s4, s6, s36
    s_addc_u32 s5, s7, 0
    s_mov_b32 s6, 0x20000
    s_mov_b32 s7, 0x20000
    s_add_u32 s8, s8, s36
    s_addc_u32 s9, s9, 0
    s_mov_b32 s10, 0x20000
    s_mov_b32 s11, 0x20000
    s_load_dword s58, s[24:25], 0
    ''')
    for i in range(16):
        a(f's_add_u32 s{40+i}, s37, {(i>>2)*16384 + (i&3)*1024}')
        a(f's_and_b32 s{40+i}, s{40+i}, 0x1ffff')
        a(f'buffer_load_dwordx4 v[{K0+4*i}:{K0+4*i+3}], v3, s[4:7], s{40+i} offen nt')
    for i in range(16):
        a(f'buffer_load_dwordx4 v[{V0+4*i}:{V0+4*i+3}], v2, s[8:11], s{40+i} offen nt')
    stamp(1)
    a(f'''
    v_bfe_u32 v5, v0, 3, 1
    v_lshl_add_u32 v4, v5, 8, v4
    v_add_u32 v4, {LQ}, v4
    v_and_b32 v6, 1, v0
    v_lshlrev_b32 v6, 4, v6
    v_mov_b32 v7, 0xffff
    v_lshlrev_b32 v6, v6, v7
    v_bfe_u32 v7, v0, 1, 2
    ''')
    for k in range(4):
        a(f'v_cmp_eq_u32 vcc, {k}, v7')
        a(f'v_cndmask_b32 v{MK+k}, 0, v6, vcc')
    a(f'''
    s_sub_u32 s36, s3, 4
    s_lshl_b32 s37, s36, 4
    s_add_u32 s37, s37, {LST}
    v_lshl_add_u32 v5, v5, 3, s37
    s_lshl_b32 s37, s36, 10
    s_add_u32 s37, s37, {LO}
    v_add_u32 v6, s37, v2
    v_mov_b32 v7, {LFL}
    s_mov_b32 s59, 0
    s_mov_b32 s56, {SCALE}
    s_mov_b32 s57, {LOG2E}
    s_waitcnt lgkmcnt(0)
    ''')
    nonce()
    a('L_kvq:')
    a('ds_read_b32 v1, v7 offset:16')
    spin('kvq')
    a('''
    s_waitcnt lgkmcnt(0)
    v_cmp_ne_u32 vcc, 0, v1
    s_cbranch_vccnz L_kvq_ok
    s_sleep 2
    s_branch L_kvq
    L_kvq_ok:
    ''')
    a(f'ds_read_b128 v[{QR}:{QR+3}], v4')
    stamp(2)
    a('s_waitcnt lgkmcnt(0)')
    for blk in range(4):
        a(f's_waitcnt vmcnt({28 - 4*blk})')
        for i in range(4*blk, 4*blk+4):
            r = K0 + 4*i
            a(f'v_mfma_f32_16x16x32_bf16 v[{r}:{r+3}], v[{r}:{r+3}], v[{QR}:{QR+3}], 0')
    for blk in range(4):
        I = [K0 + 4*i for i in range(4*blk, 4*blk+4)]
        for r in I: a(f'v_mov_b32_dpp v{r}, v{r} quad_perm:[0,0,0,0] {DPPF}')
        for k in (1, 2, 3):
            for r in I: a(f'v_add_f32_dpp v{r}, v{r+k}, v{r} quad_perm:[{k},{k},{k},{k}] {DPPF}')
        for r in I: a(f'v_cvt_pk_bf16_f32 v{r}, 0, v{r}')
        for r in I: a(f'v_mul_f32 v{r}, s56, v{r}')
        for r in I: a(f'v_cvt_pk_bf16_f32 v{r}, 0, v{r}')
        if blk == 0:
            a(f'v_max_f32 v148, v{I[0]}, v{I[1]}')
        else:
            a(f'v_max3_f32 v148, v{I[0]}, v{I[1]}, v148')
        a(f'v_max3_f32 v148, v{I[2]}, v{I[3]}, v148')
    def xrow(reg, tmp, op):
        a(f'''
        v_mov_b32 v{tmp}, v{reg}
        v_permlane16_swap_b32 v{reg}, v{tmp}
        {op} v{reg}, v{reg}, v{tmp}
        v_mov_b32 v{tmp}, v{reg}
        v_permlane32_swap_b32 v{reg}, v{tmp}
        {op} v{reg}, v{reg}, v{tmp}
        ''')
    xrow(148, 150, 'v_max_f32')
    a('v_mul_f32 v150, s57, v148')
    for blk in range(4):
        I = [K0 + 4*i for i in range(4*blk, 4*blk+4)]
        for r in I: a(f'v_fma_f32 v{r}, v{r}, s57, -v150')
        for r in I: a(f'v_exp_f32 v{r}, v{r}')
        if blk == 0:
            a(f'v_add_f32 v149, v{I[0]}, v{I[1]}')
            a(f'v_add_f32 v151, v{I[2]}, v{I[3]}')
        else:
            a(f'v_add_f32 v149, v{I[0]}, v149'); a(f'v_add_f32 v151, v{I[1]}, v151')
            a(f'v_add_f32 v149, v{I[2]}, v149'); a(f'v_add_f32 v151, v{I[3]}, v151')
        for r in I: a(f'v_cvt_pk_bf16_f32 v{r}, v{r}, v{r}')
        for r in I:
            for k in (1, 2, 3, 0): a(f'v_and_b32 v{r+k}, v{r}, v{MK+k}')
    a('v_add_f32 v149, v149, v151')
    xrow(149, 150, 'v_add_f32')
    a('ds_write_b64 v5, v[148:149]')
    stamp(3)
    for i in range(16):
        a(f's_waitcnt vmcnt({15-i})')
        c = '0' if i == 0 else f'v[{ACC}:{ACC+3}]'
        a(f'v_mfma_f32_16x16x32_bf16 v[{ACC}:{ACC+3}], v[{K0+4*i}:{K0+4*i+3}], v[{V0+4*i}:{V0+4*i+3}], {c}')
    stamp(4)
    a(f'ds_write_b128 v6, v[{ACC}:{ACC+3}]')
    a('''
    s_waitcnt lgkmcnt(0)
    s_cmp_lt_u32 s3, s32
    s_cbranch_scc1 L_cons
    s_cmp_lt_u32 s3, 7
    s_cbranch_scc1 L_fin
    s_barrier
    s_cmp_lg_u32 s3, 8
    s_cbranch_scc1 L_final
    ''')
    a(f'''
    v_lshrrev_b32 v3, 5, v0
    v_lshlrev_b32 v4, 3, v3
    v_add_u32 v4, {LST}, v4
    v_add_u32 v5, {LO}, v2
    ''')
    for k in range(4): a(f'ds_read2_b64 v[{8+4*k}:{11+4*k}], v4 offset0:{4*k} offset1:{4*k+2}')
    for k in range(8): a(f'ds_read_b128 v[{24+4*k}:{27+4*k}], v5 offset:{1024*k}')
    a(f'''
    v_and_b32 v6, 15, v0
    v_lshlrev_b32 v6, 1, v6
    v_bfe_u32 v7, v0, 4, 1
    v_add_u32 v6, v6, v7
    v_lshl_add_u32 v6, v3, 5, v6
    v_and_b32 v7, 0x30, v6
    v_and_b32 v60, 3, v6
    v_lshl_add_u32 v7, v60, 2, v7
    v_bfe_u32 v60, v6, 2, 2
    v_add_u32 v7, v7, v60
    v_lshlrev_b32 v7, 4, v7
    v_lshlrev_b32 v6, 8, v3
    v_mov_b32 v61, 0xff
    s_lshl_b32 s36, s29, 10
    s_add_u32 s36, s36, {OB}
    s_lshl_b32 s37, s30, 9
    s_lshl_b32 s38, s31, 4
    s_add_u32 s37, s37, s38
    s_add_u32 s37, s37, {SB}
    s_waitcnt lgkmcnt(8)
    v_max3_f32 v56, v8, v10, v12
    v_max3_f32 v57, v14, v16, v18
    v_max3_f32 v56, v20, v22, v56
    v_max_f32 v56, v56, v57
    v_mul_f32 v58, s57, v56
    ''')
    for k in range(8): a(f'v_fma_f32 v{8+2*k}, v{8+2*k}, s57, -v58')
    for k in range(8): a(f'v_exp_f32 v{8+2*k}, v{8+2*k}')
    a('v_mul_f32 v57, v8, v9')
    for k in range(1, 8): a(f'v_fmac_f32 v57, v{8+2*k}, v{9+2*k}')
    a('s_waitcnt lgkmcnt(0)')
    for r in range(4): a(f'v_mul_f32 v{24+r}, v8, v{24+r}')
    for k in range(1, 8):
        for r in range(4): a(f'v_fmac_f32 v{24+r}, v{8+2*k}, v{24+4*k+r}')
    for r in range(4): a(f'v_bfi_b32 v{24+r}, v61, s{60+r}, v{24+r}')
    a(f'buffer_store_dwordx4 v[24:27], v7, s[24:27], s36 offen {opol}')
    a('''
    v_bfi_b32 v58, v61, s62, v56
    v_bfi_b32 v59, v61, s63, v57
    v_bfi_b32 v56, v61, s60, v56
    v_bfi_b32 v57, v61, s61, v57
    s_mov_b32 exec_lo, 1
    s_mov_b32 exec_hi, 1
    ''')
    a(f'buffer_store_dwordx4 v[56:59], v6, s[24:27], s37 offen {opol}')
    a('s_mov_b64 exec, -1')
    stamp(5)
    a('L_final:')
    a(f'''
    s_cmp_eq_u32 s32, 0
    s_cbranch_scc1 L_fin
    s_load_dwordx2 s[4:5], s[0:1], 0
    s_sub_u32 s36, s3, 7
    s_lshl_b32 s37, s36, 2
    v_lshrrev_b32 v3, 4, v0
    v_add_u32 v3, s37, v3
    v_and_b32 v4, 15, v0
    v_mul_u32_u24 v5, 15, v3
    v_add_u32 v5, v5, v4
    v_lshlrev_b32 v3, 7, v3
    v_lshl_add_u32 v3, v4, 2, v3
    v_cmp_eq_u32 s[40:41], 15, v4
    v_cmp_gt_u32 vcc, 0x100, v5
    v_lshrrev_b32 v6, 6, v5
    v_and_b32 v7, 63, v5
    s_andn2_b64 s[42:43], vcc, s[40:41]
    v_cmp_gt_u32 vcc, {18*128}, v3
    v_mul_u32_u24 v8, 1152, v6
    v_lshl_add_u32 v8, v7, 1, v8
    s_and_b64 s[40:41], s[40:41], vcc
    v_and_b32 v9, 0x30, v7
    v_lshlrev_b32 v9, 2, v9
    v_lshl_add_u32 v9, v6, 4, v9
    v_and_b32 v10, 15, v7
    v_add_u32 v9, v9, v10
    v_lshlrev_b32 v9, 2, v9
    v_add_u32 v9, {LP}, v9
    s_lshl_b32 s38, s33, 7
    s_mul_i32 s37, s33, {18*128}
    s_add_u32 s37, s37, {AB}
    s_mov_b32 s6, 4608
    s_mov_b32 s7, 0x20000
    s_or_b64 exec, s[40:41], s[42:43]
    s_waitcnt lgkmcnt(0)
    buffer_load_ushort v11, v8, s[4:7], s38 offen
    s_barrier
    ds_read2st64_b32 v[12:13], v9 offset0:0 offset1:4
    ds_read2st64_b32 v[14:15], v9 offset0:8 offset1:12
    s_cmp_eq_u32 s32, 4
    s_cbranch_scc1 L_f4
    ds_read2st64_b32 v[16:17], v9 offset0:16 offset1:20
    s_waitcnt lgkmcnt(0)
    v_add_f32 v12, v12, v16
    v_add_f32 v13, v13, v17
    L_f4:
    s_waitcnt lgkmcnt(0)
    v_add_f32 v12, v12, v14
    v_add_f32 v13, v13, v15
    v_add_f32 v12, v12, v13
    v_cndmask_b32 v12, v12, 1.0, s[40:41]
    v_mov_b32 v13, v12
    buffer_atomic_add_f32 v13, v3, s[24:27], s37 offen sc0 sc1
    ''')
    stamp(6)
    a(f'''
    s_waitcnt vmcnt(0)
    v_mov_b32_dpp v14, v13 row_newbcast:15 {DPPF}
    v_lshlrev_b32 v11, 16, v11
    v_add_f32 v12, v12, v13
    v_cmp_eq_f32 vcc, 0x41d80000, v14
    v_add_f32 v12, v12, v11
    v_cvt_pk_bf16_f32 v12, v12, v12
    s_and_b64 exec, vcc, s[42:43]
    s_cbranch_execz L_fin
    buffer_store_short v12, v8, s[20:23], s38 offen
    s_or_b32 s36, s36, s33
    s_cmp_lg_u32 s36, 0
    s_cbranch_scc1 L_fin
    s_and_b64 exec, exec, 1
    s_cbranch_execz L_fin
    v_mov_b32 v12, s58
    buffer_store_dword v12, v3, s[24:27], 0 offen
    s_branch L_fin
    ''')
    a('L_aux:')
    a(f'''
    s_setprio 3
    s_mul_i32 s36, s3, 1152
    v_lshrrev_b32 v3, 3, v0
    v_and_b32 v4, 6, v3
    v_and_b32 v5, 7, v0
    v_xor_b32 v4, v4, v5
    v_lshlrev_b32 v4, 4, v4
    v_lshl_add_u32 v5, v3, 13, v4
    v_mul_u32_u24 v6, 9216, v3
    v_add_u32 v6, v6, v4
    v_lshlrev_b32 v7, 2, v0
    s_and_b32 s37, s31, 3
    s_mul_i32 s38, s37, 18
    s_add_u32 s38, s38, s3
    s_lshl_b32 s38, s38, 16
    s_lshr_b32 s39, s29, 2
    s_lshl_b32 s39, s39, 7
    s_add_u32 s38, s38, s39
    s_lshl_b32 s39, s3, 10
    s_mov_b32 m0, s39
    s_waitcnt lgkmcnt(0)
    s_add_u32 s4, s4, s36
    s_addc_u32 s5, s5, 0
    s_mov_b32 s6, 1152
    s_mov_b32 s7, 0x20000
    buffer_load_dwordx4 v[8:11], v2, s[4:7], 0 offen
    buffer_load_dword v12, v7, s[4:7], 0 offen offset:1024
    s_load_dword s58, s[24:25], 0
    s_mov_b32 s8, s10
    s_mov_b32 s9, s11
    s_mov_b32 s10, {576*8192}
    s_mov_b32 s11, 0x20000
    ''')
    for i in range(5):
        if i == 4:
            a('s_cmp_ge_u32 s3, 2'); a('s_cbranch_scc1 L_nowq5')
        a('buffer_load_dwordx4 v5, s[8:11], s38 offen nt lds')
        if i < 4:
            a('s_add_u32 m0, m0, 4096'); a(f's_add_u32 s38, s38, {32*8192}')
    a('L_nowq5:')
    a(f'''
    s_mul_i32 s44, s30, 9
    s_add_u32 s44, s44, s31
    s_and_b32 s45, s30, 1
    s_mul_i32 s45, s45, 7
    s_add_u32 s45, s45, s31
    s_mul_i32 s46, s28, 9
    s_add_u32 s46, s46, s45
    s_add_u32 s46, s46, {144 - 14}
    s_cmp_ge_u32 s45, 14
    s_cselect_b32 s46, s46, 999
    s_cmp_lt_u32 s31, 9
    s_cselect_b32 s44, s44, s46
    s_mul_i32 s45, s44, 21846
    s_lshr_b32 s45, s45, 16
    s_mul_i32 s46, s45, 3
    s_sub_u32 s46, s44, s46
    s_cmp_ge_u32 s44, 216
    s_cbranch_scc1 L_now1
    s_mul_i32 s38, s46, 24
    s_add_u32 s38, s38, s3
    s_mul_i32 s38, s38, {8*9216}
    s_lshl_b32 s47, s45, 7
    s_add_u32 s38, s38, s47
    s_add_u32 m0, s39, {LW1}
    s_mov_b32 s48, s16
    s_mov_b32 s49, s17
    s_mov_b32 s50, {576*9216}
    s_mov_b32 s51, 0x20000
    ''')
    for i in range(6):
        a('buffer_load_dwordx4 v6, s[48:51], s38 offen nt lds')
        if i < 5:
            a('s_add_u32 m0, m0, 4096'); a(f's_add_u32 s38, s38, {32*9216}')
    a('s_waitcnt vmcnt(10)')
    a('s_branch L_ln')
    a('L_now1:')
    a('s_waitcnt vmcnt(4)')
    a('L_ln:')
    stamp(1)
    for k in range(5):
        a(f'v_lshlrev_b32 v{14+2*k}, 16, v{8+k}')
        a(f'v_and_b32 v{15+2*k}, 0xffff0000, v{8+k}')
    a('v_add_f32 v24, v14, v15'); a('v_add_f32 v25, v16, v17')
    for k in range(18, 24, 2):
        a(f'v_add_f32 v24, v24, v{k}'); a(f'v_add_f32 v25, v25, v{k+1}')
    a('v_add_f32 v24, v24, v25')
    def allsum(r, t):
        for s in (8, 4, 2, 1): a(f'v_add_f32_dpp v{r}, v{r}, v{r} row_ror:{s} {DPPF}')
        xrow(r, t, 'v_add_f32')
    allsum(24, 25)
    a('v_mul_f32 v24, 0x3ae38e39, v24')
    a('v_sub_f32 v26, v14, v24'); a('v_mul_f32 v25, v26, v26')
    for k in range(15, 22):
        a(f'v_sub_f32 v26, v{k}, v24'); a('v_fmac_f32 v25, v26, v26')
    a('s_mov_b32 exec_hi, 0')
    for k in (22, 23):
        a(f'v_sub_f32 v26, v{k}, v24'); a('v_fmac_f32 v25, v26, v26')
    a('s_mov_b32 exec_hi, -1')
    allsum(25, 26)
    a('''
    v_mul_f32 v25, 0x3ae38e39, v25
    v_cvt_pk_bf16_f32 v24, 0, v24
    v_cvt_pk_bf16_f32 v25, 0, v25
    v_add_f32 v25, 0x3727c5ac, v25
    v_cvt_pk_bf16_f32 v25, 0, v25
    v_sqrt_f32 v25, v25
    v_cvt_pk_bf16_f32 v25, 0, v25
    v_rcp_f32 v25, v25
    ''')
    for k in range(14, 24): a(f'v_sub_f32 v{k}, v{k}, v24')
    for k in range(14, 24): a(f'v_cvt_pk_bf16_f32 v{k}, 0, v{k}')
    for k in range(14, 24): a(f'v_mul_f32 v{k}, v{k}, v25')
    for k in range(5): a(f'v_cvt_pk_bf16_f32 v{8+k}, v{14+2*k}, v{15+2*k}')
    a(f'''
    s_mul_i32 s36, s3, {XS}
    s_add_u32 s36, s36, {LXN}
    v_add_u32 v13, s36, v2
    v_add_u32 v14, s36, v7
    s_waitcnt lgkmcnt(0)
    ds_write_b128 v13, v[8:11]
    s_mov_b32 exec_hi, 0
    ds_write_b32 v14, v12 offset:1024
    s_mov_b32 exec_hi, -1
    ''')
    nonce()
    a(f'''
    s_lshl_b32 s36, s3, 2
    s_add_u32 s36, s36, {LFL}
    v_mov_b32 v13, s36
    v_mov_b32 v14, s58
    v_mov_b32 v61, 0xff
    s_mov_b32 s59, 0
    s_mov_b32 s57, {LOG2E}
    s_waitcnt vmcnt(0) lgkmcnt(0)
    ds_write_b32 v13, v61
    ''')
    stamp(2)
    a('''
    s_cmp_eq_u32 s3, 2
    s_cbranch_scc1 L_pollq
    s_cmp_eq_u32 s3, 3
    s_cbranch_scc1 L_init
    ''')
    a(f'''
    s_and_b32 s36, s31, 3
    s_mul_i32 s36, s36, 288
    s_mul_i32 s37, s46, 384
    s_lshl_b32 s38, s29, 10
    s_add_u32 s38, s38, {QB}
    s_lshl_b32 s39, s44, 10
    s_add_u32 s39, s39, {HB}
    s_cmp_eq_u32 s3, 0
    s_cselect_b32 s36, s36, s37
    s_cselect_b32 s38, s38, s39
    s_cselect_b32 s37, {LWQ}, {LW1}
    s_cselect_b32 s39, 3, 4
    s_cselect_b32 s40, 0, s44
    s_cmp_ge_u32 s40, 216
    s_cbranch_scc1 L_cons
    s_add_u32 s36, s36, {LXN}
    v_and_b32 v3, 3, v0
    v_mul_u32_u24 v4, {XS}, v3
    v_lshrrev_b32 v5, 4, v0
    v_lshl_add_u32 v4, v5, 3, v4
    v_add_u32 v4, s36, v4
    v_lshlrev_b32 v6, 8, v3
    v_lshl_add_u32 v6, v5, 6, v6
    v_bfe_u32 v5, v0, 2, 2
    v_lshl_add_u32 v6, v5, 4, v6
    ''')
    def traddr(d, base):
        a(f'''
        v_lshrrev_b32 v{d}, 2, v0
        v_and_b32 v{d+1}, 6, v{d}
        v_bfe_u32 v{d+2}, v0, 1, 1
        v_or_b32 v{d+1}, v{d+1}, v{d+2}
        v_lshlrev_b32 v{d+1}, 4, v{d+1}
        v_lshl_add_u32 v{d}, v{d}, 7, v{d+1}
        v_and_b32 v{d+1}, 1, v0
        v_lshl_add_u32 v{d}, v{d+1}, 3, v{d}
        v_add_u32 v{d}, {base}, v{d}
        v_xor_b32 v{d+1}, 32, v{d}
        v_xor_b32 v{d+2}, 64, v{d}
        v_xor_b32 v{d+3}, 0x60, v{d}
        ''')
    traddr(8, 's37')
    for r in range(16): a(f'v_mov_b32 v{64+r}, 0')
    a(f'v_mov_b32 v13, {LFL}')
    a('L_auxw:')
    a('ds_read_b128 v[16:19], v13')
    spin('auxw')
    a('''
    s_waitcnt lgkmcnt(0)
    v_and_b32 v16, v16, v17
    v_and_b32 v18, v18, v19
    v_and_b32 v16, v16, v18
    v_cmp_eq_u32 vcc, 0, v16
    s_cbranch_vccnz L_auxw
    L_ip:
    ''')
    for st in range(3):
        a(f'ds_read_b64 v[{16+2*st}:{17+2*st}], v4 offset:{32*st}')
        for u in range(4):
            r = 24 + 8*st + 2*u
            a(f'ds_read_b64_tr_b16 v[{r}:{r+1}], v{8+u} offset:{2048*st}')
    a('v_add_u32 v4, 96, v4')
    for u in range(4): a(f'v_add_u32 v{8+u}, 6144, v{8+u}')
    for st in range(3):
        a(f's_waitcnt lgkmcnt({10-5*st})')
        for u in range(4):
            r = 24 + 8*st + 2*u
            a(f'v_mfma_f32_16x16x16_bf16 v[{64+4*u}:{67+4*u}], v[{r}:{r+1}], v[{16+2*st}:{17+2*st}], v[{64+4*u}:{67+4*u}]')
    a('''
    s_sub_u32 s39, s39, 1
    s_cmp_lg_u32 s39, 0
    s_cbranch_scc1 L_ip
    ''')
    for u in range(1, 4):
        for r in range(4): a(f'v_mov_b32_dpp v{64+r}, v{64+4*u+r} quad_perm:[0,1,2,3] row_mask:0xf bank_mask:{1<<u}')
    for r in range(4): a(f'v_add_u32 v{64+r}, 0x80, v{64+r}')
    for r in range(4): a(f'v_bfi_b32 v{64+r}, v61, s{60+r}, v{64+r}')
    a('buffer_store_dwordx4 v[64:67], v6, s[24:27], s38 offen sc1')
    stamp(3)
    a('s_branch L_cons')
    a('L_init:')
    a(f'''
    s_cmp_eq_u32 s32, 0
    s_cbranch_scc1 L_cons
    s_lshl_b32 s37, s33, 7
    s_add_u32 s37, s37, {FB}
    v_mov_b32 v16, 0
    s_cmp_ge_u32 s29, 9
    s_cbranch_scc1 L_initw
    s_mul_i32 s36, s33, {18*128}
    s_add_u32 s36, s36, {AB}
    v_mov_b32 v17, 0
    v_mov_b32 v18, 0
    v_mov_b32 v19, 0
    buffer_store_dwordx4 v[16:19], v2, s[24:27], s36 offen sc1
    buffer_store_dwordx4 v[16:19], v2, s[24:27], s36 offen offset:1024 sc1
    s_mov_b64 exec, 0xffff
    buffer_store_dwordx4 v[16:19], v2, s[24:27], s36 offen offset:2048 sc1
    s_waitcnt vmcnt(0)
    s_mov_b64 exec, 1
    buffer_store_dword v14, v16, s[24:27], s37 offen sc1
    s_mov_b64 exec, -1
    L_initw:
    buffer_load_dword v17, v16, s[24:27], s37 offen sc1
    ''')
    spin('initw')
    a('''
    s_waitcnt vmcnt(0)
    v_cmp_ne_u32 vcc, s58, v17
    s_cbranch_vccnz L_initw
    ''')
    stamp(3)
    a('s_branch L_cons')
    def chk(regs_, acc):
        for i, r in enumerate(regs_): a(f'v_xor_b32 v{r}, s{60+(i&3)}, v{r}')
        a(f'v_or3_b32 v{acc}, v{regs_[0]}, v{regs_[1]}, v{regs_[2]}')
        rest = regs_[3:]
        while len(rest) >= 2:
            a(f'v_or3_b32 v{acc}, v{rest[0]}, v{rest[1]}, v{acc}'); rest = rest[2:]
        if rest: a(f'v_or_b32 v{acc}, v{rest[0]}, v{acc}')
        a(f'v_and_b32 v{acc}, 0xff, v{acc}')
        a(f'v_cmp_ne_u32 vcc, 0, v{acc}')
    a('L_pollq:')
    a(f'''
    v_lshrrev_b32 v3, 4, v0
    v_and_b32 v4, 15, v0
    v_lshlrev_b32 v4, 4, v4
    v_lshl_add_u32 v4, v3, 12, v4
    v_lshlrev_b32 v3, 7, v3
    v_and_b32 v5, 3, v0
    v_lshl_add_u32 v3, v5, 5, v3
    v_bfe_u32 v5, v0, 2, 2
    v_lshl_add_u32 v3, v5, 3, v3
    v_add_u32 v3, {LQ}, v3
    s_lshl_b32 s36, s30, 14
    s_lshr_b32 s37, s31, 2
    s_lshl_b32 s37, s37, 8
    s_add_u32 s36, s36, s37
    s_add_u32 s36, s36, {QB}
    L_pq:
    ''')
    for p in range(4): a(f'buffer_load_dwordx4 v[{16+4*p}:{19+4*p}], v4, s[24:27], s36 offen offset:{1024*p} sc1')
    spin('pq')
    a('s_waitcnt vmcnt(0)')
    chk(list(range(16, 32)), 32)
    a('s_cbranch_vccnz L_pq')
    for r in range(4):
        a(f'v_add_f32 v{16+r}, v{16+r}, v{20+r}'); a(f'v_add_f32 v{24+r}, v{24+r}, v{28+r}')
    for r in range(4): a(f'v_add_f32 v{16+r}, v{16+r}, v{24+r}')
    a(f'''
    v_cvt_pk_bf16_f32 v16, v16, v17
    v_cvt_pk_bf16_f32 v17, v18, v19
    ds_write_b64 v3, v[16:17]
    s_waitcnt lgkmcnt(0)
    ds_write_b32 v13, v61 offset:8
    ''')
    stamp(3)
    a('L_cons:')
    a(f'''
    s_cmp_ge_u32 s3, s32
    s_cbranch_scc1 L_fin
    s_setprio 0
    v_lshrrev_b32 v3, 3, v0
    v_and_b32 v4, 6, v3
    v_and_b32 v5, 7, v0
    v_xor_b32 v4, v4, v5
    v_lshlrev_b32 v4, 4, v4
    v_mul_u32_u24 v3, 1152, v3
    v_add_u32 v3, v3, v4
    v_lshrrev_b32 v4, 4, v0
    v_lshlrev_b32 v4, 6, v4
    v_and_b32 v5, 3, v0
    v_lshl_add_u32 v4, v5, 4, v4
    v_bfe_u32 v5, v0, 2, 2
    s_lshl_b32 s36, s3, 13
    s_add_u32 s36, s36, {LL}
    s_mov_b32 m0, s36
    ''')
    traddr(8, 's36')
    a(f'''
    v_lshlrev_b32 v7, 2, v0
    s_lshl_b32 s37, s3, 10
    s_add_u32 s37, s37, {LP}
    v_add_u32 v7, s37, v7
    s_lshl_b32 s37, s30, 2
    s_mul_i32 s38, s34, 6
    s_cmp_eq_u32 s32, 4
    s_cselect_b32 s37, s37, s38
    s_cselect_b32 s48, s12, s18
    s_cselect_b32 s49, s13, s19
    s_mov_b32 s50, {4608*1152}
    s_cselect_b32 s50, {4096*1152}, s50
    s_mov_b32 s51, 0x20000
    s_add_u32 s37, s37, s3
    s_mul_i32 s38, s37, {64*1152}
    s_lshl_b32 s39, s33, 7
    s_add_u32 s38, s38, s39
    s_mov_b32 s59, 0
    s_cmp_eq_u32 s32, 4
    s_cbranch_scc1 L_consO
    ''')
    def dma():
        for i in range(8):
            a('buffer_load_dwordx4 v3, s[48:51], s38 offen nt lds')
            if i < 7:
                a('s_add_u32 m0, m0, 1024'); a(f's_add_u32 s38, s38, {8*1152}')
    def trs():
        for hh in range(2):
            for u in range(4):
                for tt in range(2):
                    r = 64 + 16*hh + 4*u + 2*tt
                    a(f'ds_read_b64_tr_b16 v[{r}:{r+1}], v{8+u} offset:{2048*(2*hh+tt)}')
            if hh == 0: pass
    a(f'''
    v_lshl_add_u32 v4, v5, 8, v4
    s_mul_i32 s37, s37, 3072
    s_add_u32 s37, s37, {HB}
    L_ph:
    ''')
    for p in range(3): a(f'buffer_load_dwordx4 v[{16+4*p}:{19+4*p}], v4, s[24:27], s37 offen offset:{1024*p} sc1')
    a('s_cmp_lg_u32 s59, 0'); a('s_cbranch_scc1 L_ph2')
    dma()
    stamp(4)
    a('s_barrier'); a('s_waitcnt vmcnt(8)'); a('s_branch L_ph3')
    a('L_ph2:'); a('s_waitcnt vmcnt(0)'); a('L_ph3:')
    spin('ph')
    chk(list(range(16, 28)), 32)
    a('s_cbranch_vccnz L_ph')
    for r in range(4): a(f'v_add_f32 v{16+r}, v{16+r}, v{20+r}')
    for r in range(4): a(f'v_add_f32 v{16+r}, v{16+r}, v{24+r}')
    for r in range(4): a(f'v_cvt_pk_bf16_f32 v{16+r}, 0, v{16+r}')
    for r in range(4): a(f'v_mul_f32 v{20+r}, 0xbfb8aa3b, v{16+r}')
    for r in range(4): a(f'v_exp_f32 v{20+r}, v{20+r}')
    for r in range(4): a(f'v_add_f32 v{20+r}, 1.0, v{20+r}')
    for r in range(4): a(f'v_rcp_f32 v{20+r}, v{20+r}')
    for r in range(4): a(f'v_mul_f32 v{16+r}, v{16+r}, v{20+r}')
    a('s_waitcnt vmcnt(0)')
    trs()
    a('s_branch L_mm')
    a('L_consO:')
    dma()
    stamp(4)
    a(f'''
    v_lshl_add_u32 v4, v5, 12, v4
    v_and_b32 v5, 15, v0
    v_lshlrev_b32 v5, 4, v5
    s_lshl_b32 s37, s30, 14
    s_lshl_b32 s39, s3, 8
    s_add_u32 s37, s37, s39
    s_add_u32 s37, s37, {OB}
    s_lshl_b32 s38, s30, 9
    s_lshr_b32 s39, s3, 1
    s_lshl_b32 s39, s39, 8
    s_add_u32 s38, s38, s39
    s_add_u32 s38, s38, {SB}
    s_barrier
    s_waitcnt vmcnt(0)
    ''')
    trs()
    a('L_po:')
    a('buffer_load_dwordx4 v[32:35], v5, s[24:27], s38 offen sc1')
    for p in range(4): a(f'buffer_load_dwordx4 v[{16+4*p}:{19+4*p}], v4, s[24:27], s37 offen offset:{1024*p} sc1')
    spin('po')
    a('s_waitcnt vmcnt(0)')
    chk(list(range(16, 36)), 36)
    a('s_cbranch_vccnz L_po')
    a(f'''
    v_max_f32_dpp v36, v32, v32 quad_perm:[1,0,3,2] {DPPF}
    v_max_f32_dpp v36, v36, v36 quad_perm:[2,3,0,1] {DPPF}
    v_sub_f32 v36, v32, v36
    v_mul_f32 v36, s57, v36
    v_exp_f32 v36, v36
    v_mul_f32 v37, v36, v33
    v_add_f32_dpp v37, v37, v37 quad_perm:[1,0,3,2] {DPPF}
    v_add_f32_dpp v37, v37, v37 quad_perm:[2,3,0,1] {DPPF}
    v_rcp_f32 v37, v37
    v_mul_f32 v36, v36, v37
    ''')
    for r in range(4): a(f'v_mul_f32_dpp v{16+r}, v36, v{16+r} quad_perm:[0,0,0,0] {DPPF}')
    for s in (1, 2, 3):
        for r in range(4): a(f'v_fmac_f32_dpp v{16+r}, v36, v{16+4*s+r} quad_perm:[{s},{s},{s},{s}] {DPPF}')
    a('L_mm:')
    stamp(5)
    a('v_cvt_pk_bf16_f32 v16, v16, v17'); a('v_cvt_pk_bf16_f32 v17, v18, v19')
    for tt in range(4):
        for k in range(2): a(f'v_mov_b32_dpp v{20+2*tt+k}, v{16+k} quad_perm:[{tt},{tt},{tt},{tt}] {DPPF}')
    a('s_waitcnt lgkmcnt(0)')
    for hh in range(2):
        for u in range(4):
            r = 64 + 16*hh + 4*u
            c = '0' if hh == 0 else f'v[{40+4*u}:{43+4*u}]'
            a(f'v_mfma_f32_16x16x32_bf16 v[{40+4*u}:{43+4*u}], v[{20+4*hh}:{23+4*hh}], v[{r}:{r+3}], {c}')
    a('''
    ds_write2st64_b32 v7, v40, v44 offset0:0 offset1:1
    ds_write2st64_b32 v7, v48, v52 offset0:2 offset1:3
    s_waitcnt lgkmcnt(0)
    ''')
    stamp(6)
    a('s_barrier')
    a('L_fin:')
    if stamps:
        stamp(7)
        a(f'''
        s_waitcnt lgkmcnt(0)
        s_mul_i32 s36, s29, 12
        s_add_u32 s36, s36, s3
        s_lshl_b32 s36, s36, 5
        s_add_u32 s36, s36, {STAMP}
        s_mov_b64 exec, 1
        v_mov_b32 v1, 0
        ''')
        for i in range(8): a(f'v_mov_b32 v{8+i}, s{64+2*i}')
        a('buffer_store_dwordx4 v[8:11], v1, s[24:27], s36 offen')
        a('buffer_store_dwordx4 v[12:15], v1, s[24:27], s36 offen offset:16')
    a('L_exit:')
    a('s_endpgm')
    a(f'''
    .section .rodata,"a"
    .p2align 6
    .amdhsa_kernel {NAME}_kernel
    .amdhsa_next_free_vgpr {vg}
    .amdhsa_next_free_sgpr 96
    .amdhsa_accum_offset {vg}
    .amdhsa_group_segment_fixed_size 0
    .amdhsa_kernarg_size 88
    .amdhsa_user_sgpr_count 2
    .amdhsa_user_sgpr_kernarg_segment_ptr 1
    .amdhsa_system_sgpr_workgroup_id_x 1
    .amdhsa_float_denorm_mode_32 3
    .end_amdhsa_kernel
    ''')
    n = a.pad(verbose=('-v' in sys.argv))
    return a.text()

if __name__ == '__main__':
    open('k1.s', 'w').write(gen())
    open('k1_st.s', 'w').write(gen(stamps=1))
    open('k1f.s', 'w').write(gen(opol=''))
    open('k1f_st.s', 'w').write(gen(stamps=1, opol=''))
```

```python
import sys
from asmlib import Asm
NAME = 'parallel_sum__sliding_block_cached__dense_activation_silu__decode'

FB = 0x400
AB = 0x1000
SB = 0x8000
QB = 0x10000
HB = 0x50000
OB = 0x90000
WSZ = 0xD0000
STAMP = 0x100000
LWQ = 0
LW1 = 18432
LL = LW1 + 24576
LXN = LL + 49152
XS = 1184
LQ = LXN + 4 * XS
LFL = LQ + 512
LST = LFL + 64
LO = LST + 128
LP = LO + 8192
LDS = LP + 6144
LOG2E = 0x3FB8AA3B
SCALE = 0x3DB504F3
DPPF = 'row_mask:0xf bank_mask:0xf'

def gen(stamps=0, rot=1024, spinmax=200000, opol='sc1', late_h=1, vg=168, diag=None):
    a = Asm()
    nst = [0]
    def stamp(i):
        if stamps or (diag and diag[2] == i): a(f's_memrealtime s[{64+2*i}:{65+2*i}]')
    a(f'; @launch grid=(256,1,1) block=(768,1,1) lds={LDS}')
    a('.amdgcn_target "amdgcn-amd-amdhsa--gfx950"')
    a('.text')
    a(f'.globl {NAME}_kernel')
    a('.p2align 8')
    a(f'.type {NAME}_kernel,@function')
    a(f'{NAME}_kernel:')
    a('s_cmp_ge_u32 s2, 256')
    a('s_cbranch_scc1 L_exit')
    if stamps or diag:
        for i in range(8): a(f's_mov_b32 s{64+2*i}, 0')
    stamp(0)
    a('''
    s_load_dwordx16 s[4:19], s[0:1], 0
    s_load_dwordx2 s[20:21], s[0:1], 64
    s_load_dwordx2 s[24:25], s[0:1], 80
    v_lshrrev_b32 v1, 6, v0
    v_and_b32 v0, 63, v0
    v_readfirstlane_b32 s3, v1
    s_and_b32 s28, s2, 7
    s_lshr_b32 s29, s2, 3
    s_lshl_b32 s30, s28, 5
    s_add_u32 s29, s29, s30
    s_lshr_b32 s30, s29, 4
    s_and_b32 s31, s29, 15
    v_lshlrev_b32 v2, 4, v0
    s_mov_b32 s26, %d
    s_mov_b32 s27, 0x20000
    s_mov_b32 s22, 4608
    s_mov_b32 s23, 0x20000
    ''' % (WSZ if not stamps else 0x200000))
    a('''
    s_mul_i32 s35, s30, 7
    s_add_u32 s35, s35, s31
    s_sub_u32 s35, s35, 9
    s_mul_i32 s34, s35, 7282
    s_lshr_b32 s34, s34, 16
    s_mul_i32 s33, s34, 9
    s_sub_u32 s33, s35, s33
    s_cmp_lt_u32 s35, 108
    s_cselect_b32 s32, 6, 0
    s_cmp_lt_u32 s31, 9
    s_cselect_b32 s32, 4, s32
    s_cselect_b32 s33, s31, s33
    s_cmp_lg_u32 s3, 0
    s_cbranch_scc1 L_noinit
    v_lshlrev_b32 v3, 2, v0
    v_add_u32 v3, %d, v3
    v_mov_b32 v4, 0
    s_mov_b64 exec, 0xffff
    ds_write_b32 v3, v4
    s_mov_b64 exec, -1
    s_waitcnt lgkmcnt(0)
    L_noinit:
    s_barrier
    s_cmp_lt_u32 s3, 4
    s_cbranch_scc1 L_aux
    ''' % LFL)
    def nonce():
        a('''
        s_add_u32 s58, s58, 0x9E3779B9
        s_and_b32 s60, s58, 0xff
        s_bfe_u32 s61, s58, 0x80008
        s_bfe_u32 s62, s58, 0x80010
        s_lshr_b32 s63, s58, 24
        ''')
    def spin(lbl):
        a(f'''
        s_add_u32 s59, s59, 1
        s_cmp_gt_u32 s59, {spinmax}
        s_cbranch_scc1 L_exit
        ''')
    K0 = 8; V0 = 72; QR = 136; MK = 140; ACC = 144
    a(f'''
    s_setprio 1
    s_lshr_b32 s36, s31, 2
    s_lshl_b32 s36, s36, 25
    s_lshl_b32 s37, s30, 21
    s_add_u32 s36, s36, s37
    s_and_b32 s37, s31, 3
    s_lshl_b32 s37, s37, 17
    s_add_u32 s36, s36, s37
    s_add_u32 s36, s36, {6144*256}
    s_and_b32 s37, s3, 3
    s_lshl_b32 s37, s37, 12
    s_lshr_b32 s38, s3, 3
    s_lshl_b32 s38, s38, 16
    s_add_u32 s37, s37, s38
    s_mul_i32 s38, s2, {rot}
    s_add_u32 s37, s37, s38
    v_bfe_u32 v3, v0, 2, 2
    v_lshlrev_b32 v3, 8, v3
    v_lshrrev_b32 v4, 4, v0
    v_lshlrev_b32 v4, 6, v4
    v_and_b32 v5, 3, v0
    v_lshl_add_u32 v4, v5, 4, v4
    v_add_u32 v3, v3, v4
    s_waitcnt lgkmcnt(0)
    s_add_u32 s4, s6, s36
    s_addc_u32 s5, s7, 0
    s_mov_b32 s6, 0x20000
    s_mov_b32 s7, 0x20000
    s_add_u32 s8, s8, s36
    s_addc_u32 s9, s9, 0
    s_mov_b32 s10, 0x20000
    s_mov_b32 s11, 0x20000
    s_load_dword s58, s[24:25], 0
    ''')
    for i in range(16):
        a(f's_add_u32 s{40+i}, s37, {(i>>2)*16384 + (i&3)*1024}')
        a(f's_and_b32 s{40+i}, s{40+i}, 0x1ffff')
        a(f'buffer_load_dwordx4 v[{K0+4*i}:{K0+4*i+3}], v3, s[4:7], s{40+i} offen nt')
    for i in range(16):
        a(f'buffer_load_dwordx4 v[{V0+4*i}:{V0+4*i+3}], v2, s[8:11], s{40+i} offen nt')
    stamp(1)
    a(f'''
    v_bfe_u32 v5, v0, 3, 1
    v_lshl_add_u32 v4, v5, 8, v4
    v_add_u32 v4, {LQ}, v4
    v_and_b32 v6, 1, v0
    v_lshlrev_b32 v6, 4, v6
    v_mov_b32 v7, 0xffff
    v_lshlrev_b32 v6, v6, v7
    v_bfe_u32 v7, v0, 1, 2
    ''')
    for k in range(4):
        a(f'v_cmp_eq_u32 vcc, {k}, v7')
        a(f'v_cndmask_b32 v{MK+k}, 0, v6, vcc')
    a(f'''
    s_sub_u32 s36, s3, 4
    s_lshl_b32 s37, s36, 4
    s_add_u32 s37, s37, {LST}
    v_lshl_add_u32 v5, v5, 3, s37
    s_lshl_b32 s37, s36, 10
    s_add_u32 s37, s37, {LO}
    v_add_u32 v6, s37, v2
    v_mov_b32 v7, {LFL}
    s_mov_b32 s59, 0
    s_mov_b32 s56, {SCALE}
    s_mov_b32 s57, {LOG2E}
    s_waitcnt lgkmcnt(0)
    ''')
    nonce()
    a('L_kvq:')
    a('ds_read_b32 v1, v7 offset:16')
    spin('kvq')
    a('''
    s_waitcnt lgkmcnt(0)
    v_cmp_ne_u32 vcc, 0, v1
    s_cbranch_vccnz L_kvq_ok
    s_sleep 2
    s_branch L_kvq
    L_kvq_ok:
    ''')
    a(f'ds_read_b128 v[{QR}:{QR+3}], v4')
    stamp(2)
    a('s_waitcnt lgkmcnt(0)')
    for blk in range(4):
        a(f's_waitcnt vmcnt({28 - 4*blk})')
        for i in range(4*blk, 4*blk+4):
            r = K0 + 4*i
            a(f'v_mfma_f32_16x16x32_bf16 v[{r}:{r+3}], v[{r}:{r+3}], v[{QR}:{QR+3}], 0')
    for blk in range(4):
        I = [K0 + 4*i for i in range(4*blk, 4*blk+4)]
        for r in I: a(f'v_mov_b32_dpp v{r}, v{r} quad_perm:[0,0,0,0] {DPPF}')
        for k in (1, 2, 3):
            for r in I: a(f'v_add_f32_dpp v{r}, v{r+k}, v{r} quad_perm:[{k},{k},{k},{k}] {DPPF}')
        for r in I: a(f'v_cvt_pk_bf16_f32 v{r}, 0, v{r}')
        for r in I: a(f'v_mul_f32 v{r}, s56, v{r}')
        for r in I: a(f'v_cvt_pk_bf16_f32 v{r}, 0, v{r}')
        if blk == 0:
            a(f'v_max_f32 v148, v{I[0]}, v{I[1]}')
        else:
            a(f'v_max3_f32 v148, v{I[0]}, v{I[1]}, v148')
        a(f'v_max3_f32 v148, v{I[2]}, v{I[3]}, v148')
    def xrow(reg, tmp, op):
        a(f'''
        v_mov_b32 v{tmp}, v{reg}
        v_permlane16_swap_b32 v{reg}, v{tmp}
        {op} v{reg}, v{reg}, v{tmp}
        v_mov_b32 v{tmp}, v{reg}
        v_permlane32_swap_b32 v{reg}, v{tmp}
        {op} v{reg}, v{reg}, v{tmp}
        ''')
    xrow(148, 150, 'v_max_f32')
    a('v_mul_f32 v150, s57, v148')
    for blk in range(4):
        I = [K0 + 4*i for i in range(4*blk, 4*blk+4)]
        for r in I: a(f'v_fma_f32 v{r}, v{r}, s57, -v150')
        for r in I: a(f'v_exp_f32 v{r}, v{r}')
        if blk == 0:
            a(f'v_add_f32 v149, v{I[0]}, v{I[1]}')
            a(f'v_add_f32 v151, v{I[2]}, v{I[3]}')
        else:
            a(f'v_add_f32 v149, v{I[0]}, v149'); a(f'v_add_f32 v151, v{I[1]}, v151')
            a(f'v_add_f32 v149, v{I[2]}, v149'); a(f'v_add_f32 v151, v{I[3]}, v151')
        for r in I: a(f'v_cvt_pk_bf16_f32 v{r}, v{r}, v{r}')
        for r in I:
            for k in (1, 2, 3, 0): a(f'v_and_b32 v{r+k}, v{r}, v{MK+k}')
    a('v_add_f32 v149, v149, v151')
    xrow(149, 150, 'v_add_f32')
    a('ds_write_b64 v5, v[148:149]')
    stamp(3)
    for i in range(16):
        a(f's_waitcnt vmcnt({15-i})')
        c = '0' if i == 0 else f'v[{ACC}:{ACC+3}]'
        a(f'v_mfma_f32_16x16x32_bf16 v[{ACC}:{ACC+3}], v[{K0+4*i}:{K0+4*i+3}], v[{V0+4*i}:{V0+4*i+3}], {c}')
    stamp(4)
    a(f'ds_write_b128 v6, v[{ACC}:{ACC+3}]')
    a('''
    s_waitcnt lgkmcnt(0)
    s_cmp_lt_u32 s3, s32
    s_cbranch_scc1 L_cons
    s_cmp_lt_u32 s3, 7
    s_cbranch_scc1 L_fin
    s_barrier
    s_cmp_lg_u32 s3, 8
    s_cbranch_scc1 L_final
    ''')
    a(f'''
    v_lshrrev_b32 v3, 5, v0
    v_lshlrev_b32 v4, 3, v3
    v_add_u32 v4, {LST}, v4
    v_add_u32 v5, {LO}, v2
    ''')
    for k in range(4): a(f'ds_read2_b64 v[{8+4*k}:{11+4*k}], v4 offset0:{4*k} offset1:{4*k+2}')
    for k in range(8): a(f'ds_read_b128 v[{24+4*k}:{27+4*k}], v5 offset:{1024*k}')
    a(f'''
    v_and_b32 v6, 15, v0
    v_lshlrev_b32 v6, 1, v6
    v_bfe_u32 v7, v0, 4, 1
    v_add_u32 v6, v6, v7
    v_lshl_add_u32 v6, v3, 5, v6
    v_and_b32 v7, 0x30, v6
    v_and_b32 v60, 3, v6
    v_lshl_add_u32 v7, v60, 2, v7
    v_bfe_u32 v60, v6, 2, 2
    v_add_u32 v7, v7, v60
    v_lshlrev_b32 v7, 4, v7
    v_lshlrev_b32 v6, 8, v3
    v_mov_b32 v61, 0xff
    s_lshl_b32 s36, s29, 10
    s_add_u32 s36, s36, {OB}
    s_lshl_b32 s37, s30, 9
    s_lshl_b32 s38, s31, 4
    s_add_u32 s37, s37, s38
    s_add_u32 s37, s37, {SB}
    s_waitcnt lgkmcnt(8)
    v_max3_f32 v56, v8, v10, v12
    v_max3_f32 v57, v14, v16, v18
    v_max3_f32 v56, v20, v22, v56
    v_max_f32 v56, v56, v57
    v_mul_f32 v58, s57, v56
    ''')
    for k in range(8): a(f'v_fma_f32 v{8+2*k}, v{8+2*k}, s57, -v58')
    for k in range(8): a(f'v_exp_f32 v{8+2*k}, v{8+2*k}')
    a('v_mul_f32 v57, v8, v9')
    for k in range(1, 8): a(f'v_fmac_f32 v57, v{8+2*k}, v{9+2*k}')
    a('s_waitcnt lgkmcnt(0)')
    for r in range(4): a(f'v_mul_f32 v{24+r}, v8, v{24+r}')
    for k in range(1, 8):
        for r in range(4): a(f'v_fmac_f32 v{24+r}, v{8+2*k}, v{24+4*k+r}')
    for r in range(4): a(f'v_bfi_b32 v{24+r}, v61, s{60+r}, v{24+r}')
    a(f'buffer_store_dwordx4 v[24:27], v7, s[24:27], s36 offen {opol}')
    a('''
    v_bfi_b32 v58, v61, s62, v56
    v_bfi_b32 v59, v61, s63, v57
    v_bfi_b32 v56, v61, s60, v56
    v_bfi_b32 v57, v61, s61, v57
    s_mov_b32 exec_lo, 1
    s_mov_b32 exec_hi, 1
    ''')
    a(f'buffer_store_dwordx4 v[56:59], v6, s[24:27], s37 offen {opol}')
    a('s_mov_b64 exec, -1')
    stamp(5)
    a('L_final:')
    a(f'''
    s_cmp_eq_u32 s32, 0
    s_cbranch_scc1 L_fin
    s_load_dwordx2 s[4:5], s[0:1], 0
    s_sub_u32 s36, s3, 7
    s_lshl_b32 s37, s36, 2
    v_lshrrev_b32 v3, 4, v0
    v_add_u32 v3, s37, v3
    v_and_b32 v4, 15, v0
    v_mul_u32_u24 v5, 15, v3
    v_add_u32 v5, v5, v4
    v_lshlrev_b32 v3, 7, v3
    v_lshl_add_u32 v3, v4, 2, v3
    v_cmp_eq_u32 s[40:41], 15, v4
    v_cmp_gt_u32 vcc, 0x100, v5
    v_lshrrev_b32 v6, 6, v5
    v_and_b32 v7, 63, v5
    s_andn2_b64 s[42:43], vcc, s[40:41]
    v_cmp_gt_u32 vcc, {18*128}, v3
    v_mul_u32_u24 v8, 1152, v6
    v_lshl_add_u32 v8, v7, 1, v8
    s_and_b64 s[40:41], s[40:41], vcc
    v_and_b32 v9, 0x30, v7
    v_lshlrev_b32 v9, 2, v9
    v_lshl_add_u32 v9, v6, 4, v9
    v_and_b32 v10, 15, v7
    v_add_u32 v9, v9, v10
    v_lshlrev_b32 v9, 2, v9
    v_add_u32 v9, {LP}, v9
    s_lshl_b32 s38, s33, 7
    s_mul_i32 s37, s33, {18*128}
    s_add_u32 s37, s37, {AB}
    s_mov_b32 s6, 4608
    s_mov_b32 s7, 0x20000
    s_or_b64 exec, s[40:41], s[42:43]
    s_waitcnt lgkmcnt(0)
    buffer_load_ushort v11, v8, s[4:7], s38 offen
    s_barrier
    ds_read2st64_b32 v[12:13], v9 offset0:0 offset1:4
    ds_read2st64_b32 v[14:15], v9 offset0:8 offset1:12
    s_cmp_eq_u32 s32, 4
    s_cbranch_scc1 L_f4
    ds_read2st64_b32 v[16:17], v9 offset0:16 offset1:20
    s_waitcnt lgkmcnt(0)
    v_add_f32 v12, v12, v16
    v_add_f32 v13, v13, v17
    L_f4:
    s_waitcnt lgkmcnt(0)
    v_add_f32 v12, v12, v14
    v_add_f32 v13, v13, v15
    v_add_f32 v12, v12, v13
    v_cndmask_b32 v12, v12, 1.0, s[40:41]
    v_mov_b32 v13, v12
    buffer_atomic_add_f32 v13, v3, s[24:27], s37 offen sc0 sc1
    ''')
    stamp(6)
    a(f'''
    s_waitcnt vmcnt(0)
    v_mov_b32_dpp v14, v13 row_newbcast:15 {DPPF}
    v_lshlrev_b32 v11, 16, v11
    v_add_f32 v12, v12, v13
    v_cmp_eq_f32 vcc, 0x41d80000, v14
    v_add_f32 v12, v12, v11
    v_cvt_pk_bf16_f32 v12, v12, v12
    s_and_b64 exec, vcc, s[42:43]
    s_cbranch_execz L_fin
    buffer_store_short v12, v8, s[20:23], s38 offen
    s_or_b32 s36, s36, s33
    s_cmp_lg_u32 s36, 0
    s_cbranch_scc1 L_fin
    s_and_b64 exec, exec, 1
    s_cbranch_execz L_fin
    v_mov_b32 v12, s58
    buffer_store_dword v12, v3, s[24:27], 0 offen
    s_branch L_fin
    ''')
    a('L_aux:')
    a(f'''
    s_setprio 3
    s_mul_i32 s36, s3, 1152
    v_lshrrev_b32 v3, 3, v0
    v_and_b32 v4, 6, v3
    v_and_b32 v5, 7, v0
    v_xor_b32 v4, v4, v5
    v_lshlrev_b32 v4, 4, v4
    v_lshl_add_u32 v5, v3, 13, v4
    v_mul_u32_u24 v6, 9216, v3
    v_add_u32 v6, v6, v4
    v_lshlrev_b32 v7, 2, v0
    s_and_b32 s37, s31, 3
    s_mul_i32 s38, s37, 18
    s_add_u32 s38, s38, s3
    s_lshl_b32 s38, s38, 16
    s_lshr_b32 s39, s29, 2
    s_lshl_b32 s39, s39, 7
    s_add_u32 s38, s38, s39
    s_lshl_b32 s39, s3, 10
    s_mov_b32 m0, s39
    s_waitcnt lgkmcnt(0)
    s_add_u32 s4, s4, s36
    s_addc_u32 s5, s5, 0
    s_mov_b32 s6, 1152
    s_mov_b32 s7, 0x20000
    buffer_load_dwordx4 v[8:11], v2, s[4:7], 0 offen
    buffer_load_dword v12, v7, s[4:7], 0 offen offset:1024
    s_load_dword s58, s[24:25], 0
    s_mov_b32 s8, s10
    s_mov_b32 s9, s11
    s_mov_b32 s10, {576*8192}
    s_mov_b32 s11, 0x20000
    ''')
    for i in range(5):
        if i == 4:
            a('s_cmp_ge_u32 s3, 2'); a('s_cbranch_scc1 L_nowq5')
        a('buffer_load_dwordx4 v5, s[8:11], s38 offen nt lds')
        if i < 4:
            a('s_add_u32 m0, m0, 4096'); a(f's_add_u32 s38, s38, {32*8192}')
    a('L_nowq5:')
    a(f'''
    s_mul_i32 s44, s30, 9
    s_add_u32 s44, s44, s31
    s_and_b32 s45, s30, 1
    s_mul_i32 s45, s45, 7
    s_add_u32 s45, s45, s31
    s_mul_i32 s46, s28, 9
    s_add_u32 s46, s46, s45
    s_add_u32 s46, s46, {144 - 14}
    s_cmp_ge_u32 s45, 14
    s_cselect_b32 s46, s46, 999
    s_cmp_lt_u32 s31, 9
    s_cselect_b32 s44, s44, s46
    s_mul_i32 s45, s44, 21846
    s_lshr_b32 s45, s45, 16
    s_mul_i32 s46, s45, 3
    s_sub_u32 s46, s44, s46
    s_cmp_ge_u32 s44, 216
    s_cbranch_scc1 L_now1
    s_mul_i32 s38, s46, 24
    s_add_u32 s38, s38, s3
    s_mul_i32 s38, s38, {8*9216}
    s_lshl_b32 s47, s45, 7
    s_add_u32 s38, s38, s47
    s_add_u32 m0, s39, {LW1}
    s_mov_b32 s48, s16
    s_mov_b32 s49, s17
    s_mov_b32 s50, {576*9216}
    s_mov_b32 s51, 0x20000
    ''')
    for i in range(6):
        a('buffer_load_dwordx4 v6, s[48:51], s38 offen nt lds')
        if i < 5:
            a('s_add_u32 m0, m0, 4096'); a(f's_add_u32 s38, s38, {32*9216}')
    a('s_waitcnt vmcnt(10)')
    a('s_branch L_ln')
    a('L_now1:')
    a('s_waitcnt vmcnt(4)')
    a('L_ln:')
    stamp(1)
    for k in range(5):
        a(f'v_lshlrev_b32 v{14+2*k}, 16, v{8+k}')
        a(f'v_and_b32 v{15+2*k}, 0xffff0000, v{8+k}')
    a('v_add_f32 v24, v14, v15'); a('v_add_f32 v25, v16, v17')
    for k in range(18, 24, 2):
        a(f'v_add_f32 v24, v24, v{k}'); a(f'v_add_f32 v25, v25, v{k+1}')
    a('v_add_f32 v24, v24, v25')
    def allsum(r, t):
        for s in (8, 4, 2, 1): a(f'v_add_f32_dpp v{r}, v{r}, v{r} row_ror:{s} {DPPF}')
        xrow(r, t, 'v_add_f32')
    allsum(24, 25)
    a('v_mul_f32 v24, 0x3ae38e39, v24')
    a('v_sub_f32 v26, v14, v24'); a('v_mul_f32 v25, v26, v26')
    for k in range(15, 22):
        a(f'v_sub_f32 v26, v{k}, v24'); a('v_fmac_f32 v25, v26, v26')
    a('s_mov_b32 exec_hi, 0')
    for k in (22, 23):
        a(f'v_sub_f32 v26, v{k}, v24'); a('v_fmac_f32 v25, v26, v26')
    a('s_mov_b32 exec_hi, -1')
    allsum(25, 26)
    a('''
    v_mul_f32 v25, 0x3ae38e39, v25
    v_cvt_pk_bf16_f32 v24, 0, v24
    v_cvt_pk_bf16_f32 v25, 0, v25
    v_add_f32 v25, 0x3727c5ac, v25
    v_cvt_pk_bf16_f32 v25, 0, v25
    v_sqrt_f32 v25, v25
    v_cvt_pk_bf16_f32 v25, 0, v25
    v_rcp_f32 v25, v25
    ''')
    for k in range(14, 24): a(f'v_sub_f32 v{k}, v{k}, v24')
    for k in range(14, 24): a(f'v_cvt_pk_bf16_f32 v{k}, 0, v{k}')
    for k in range(14, 24): a(f'v_mul_f32 v{k}, v{k}, v25')
    for k in range(5): a(f'v_cvt_pk_bf16_f32 v{8+k}, v{14+2*k}, v{15+2*k}')
    a(f'''
    s_mul_i32 s36, s3, {XS}
    s_add_u32 s36, s36, {LXN}
    v_add_u32 v13, s36, v2
    v_add_u32 v14, s36, v7
    s_waitcnt lgkmcnt(0)
    ds_write_b128 v13, v[8:11]
    s_mov_b32 exec_hi, 0
    ds_write_b32 v14, v12 offset:1024
    s_mov_b32 exec_hi, -1
    ''')
    nonce()
    a(f'''
    s_lshl_b32 s36, s3, 2
    s_add_u32 s36, s36, {LFL}
    v_mov_b32 v13, s36
    v_mov_b32 v14, s58
    v_mov_b32 v61, 0xff
    s_mov_b32 s59, 0
    s_mov_b32 s57, {LOG2E}
    s_waitcnt vmcnt(0) lgkmcnt(0)
    ds_write_b32 v13, v61
    ''')
    stamp(2)
    a('''
    s_cmp_eq_u32 s3, 2
    s_cbranch_scc1 L_pollq
    s_cmp_eq_u32 s3, 3
    s_cbranch_scc1 L_init
    ''')
    a(f'''
    s_and_b32 s36, s31, 3
    s_mul_i32 s36, s36, 288
    s_mul_i32 s37, s46, 384
    s_lshl_b32 s38, s29, 10
    s_add_u32 s38, s38, {QB}
    s_lshl_b32 s39, s44, 10
    s_add_u32 s39, s39, {HB}
    s_cmp_eq_u32 s3, 0
    s_cselect_b32 s36, s36, s37
    s_cselect_b32 s38, s38, s39
    s_cselect_b32 s37, {LWQ}, {LW1}
    s_cselect_b32 s39, 3, 4
    s_cselect_b32 s40, 0, s44
    s_cmp_ge_u32 s40, 216
    s_cbranch_scc1 L_cons
    s_add_u32 s36, s36, {LXN}
    v_and_b32 v3, 3, v0
    v_mul_u32_u24 v4, {XS}, v3
    v_lshrrev_b32 v5, 4, v0
    v_lshl_add_u32 v4, v5, 3, v4
    v_add_u32 v4, s36, v4
    v_lshlrev_b32 v6, 8, v3
    v_lshl_add_u32 v6, v5, 6, v6
    v_bfe_u32 v5, v0, 2, 2
    v_lshl_add_u32 v6, v5, 4, v6
    ''')
    def traddr(d, base):
        a(f'''
        v_lshrrev_b32 v{d}, 2, v0
        v_and_b32 v{d+1}, 6, v{d}
        v_bfe_u32 v{d+2}, v0, 1, 1
        v_or_b32 v{d+1}, v{d+1}, v{d+2}
        v_lshlrev_b32 v{d+1}, 4, v{d+1}
        v_lshl_add_u32 v{d}, v{d}, 7, v{d+1}
        v_and_b32 v{d+1}, 1, v0
        v_lshl_add_u32 v{d}, v{d+1}, 3, v{d}
        v_add_u32 v{d}, {base}, v{d}
        v_xor_b32 v{d+1}, 32, v{d}
        v_xor_b32 v{d+2}, 64, v{d}
        v_xor_b32 v{d+3}, 0x60, v{d}
        ''')
    traddr(8, 's37')
    for r in range(16): a(f'v_mov_b32 v{64+r}, 0')
    a(f'v_mov_b32 v13, {LFL}')
    a('L_auxw:')
    a('ds_read_b128 v[16:19], v13')
    spin('auxw')
    a('''
    s_waitcnt lgkmcnt(0)
    v_and_b32 v16, v16, v17
    v_and_b32 v18, v18, v19
    v_and_b32 v16, v16, v18
    v_cmp_eq_u32 vcc, 0, v16
    s_cbranch_vccnz L_auxw
    L_ip:
    ''')
    for st in range(3):
        a(f'ds_read_b64 v[{16+2*st}:{17+2*st}], v4 offset:{32*st}')
        for u in range(4):
            r = 24 + 8*st + 2*u
            a(f'ds_read_b64_tr_b16 v[{r}:{r+1}], v{8+u} offset:{2048*st}')
    a('v_add_u32 v4, 96, v4')
    for u in range(4): a(f'v_add_u32 v{8+u}, 6144, v{8+u}')
    for st in range(3):
        a(f's_waitcnt lgkmcnt({10-5*st})')
        for u in range(4):
            r = 24 + 8*st + 2*u
            a(f'v_mfma_f32_16x16x16_bf16 v[{64+4*u}:{67+4*u}], v[{r}:{r+1}], v[{16+2*st}:{17+2*st}], v[{64+4*u}:{67+4*u}]')
    a('''
    s_sub_u32 s39, s39, 1
    s_cmp_lg_u32 s39, 0
    s_cbranch_scc1 L_ip
    ''')
    for u in range(1, 4):
        for r in range(4): a(f'v_mov_b32_dpp v{64+r}, v{64+4*u+r} quad_perm:[0,1,2,3] row_mask:0xf bank_mask:{1<<u}')
    for r in range(4): a(f'v_add_u32 v{64+r}, 0x80, v{64+r}')
    for r in range(4): a(f'v_bfi_b32 v{64+r}, v61, s{60+r}, v{64+r}')
    a('buffer_store_dwordx4 v[64:67], v6, s[24:27], s38 offen sc1')
    stamp(3)
    a('s_branch L_cons')
    a('L_init:')
    a(f'''
    s_cmp_eq_u32 s32, 0
    s_cbranch_scc1 L_cons
    s_lshl_b32 s37, s33, 7
    s_add_u32 s37, s37, {FB}
    v_mov_b32 v16, 0
    s_cmp_ge_u32 s29, 9
    s_cbranch_scc1 L_initw
    s_mul_i32 s36, s33, {18*128}
    s_add_u32 s36, s36, {AB}
    v_mov_b32 v17, 0
    v_mov_b32 v18, 0
    v_mov_b32 v19, 0
    buffer_store_dwordx4 v[16:19], v2, s[24:27], s36 offen sc1
    buffer_store_dwordx4 v[16:19], v2, s[24:27], s36 offen offset:1024 sc1
    s_mov_b64 exec, 0xffff
    buffer_store_dwordx4 v[16:19], v2, s[24:27], s36 offen offset:2048 sc1
    s_waitcnt vmcnt(0)
    s_mov_b64 exec, 1
    buffer_store_dword v14, v16, s[24:27], s37 offen sc1
    s_mov_b64 exec, -1
    L_initw:
    buffer_load_dword v17, v16, s[24:27], s37 offen sc1
    ''')
    spin('initw')
    a('''
    s_waitcnt vmcnt(0)
    v_cmp_ne_u32 vcc, s58, v17
    s_cbranch_vccnz L_initw
    ''')
    stamp(3)
    a('s_branch L_cons')
    def chk(regs_, acc):
        for i, r in enumerate(regs_): a(f'v_xor_b32 v{r}, s{60+(i&3)}, v{r}')
        a(f'v_or3_b32 v{acc}, v{regs_[0]}, v{regs_[1]}, v{regs_[2]}')
        rest = regs_[3:]
        while len(rest) >= 2:
            a(f'v_or3_b32 v{acc}, v{rest[0]}, v{rest[1]}, v{acc}'); rest = rest[2:]
        if rest: a(f'v_or_b32 v{acc}, v{rest[0]}, v{acc}')
        a(f'v_and_b32 v{acc}, 0xff, v{acc}')
        a(f'v_cmp_ne_u32 vcc, 0, v{acc}')
    a('L_pollq:')
    a(f'''
    v_lshrrev_b32 v3, 4, v0
    v_and_b32 v4, 15, v0
    v_lshlrev_b32 v4, 4, v4
    v_lshl_add_u32 v4, v3, 12, v4
    v_lshlrev_b32 v3, 7, v3
    v_and_b32 v5, 3, v0
    v_lshl_add_u32 v3, v5, 5, v3
    v_bfe_u32 v5, v0, 2, 2
    v_lshl_add_u32 v3, v5, 3, v3
    v_add_u32 v3, {LQ}, v3
    s_lshl_b32 s36, s30, 14
    s_lshr_b32 s37, s31, 2
    s_lshl_b32 s37, s37, 8
    s_add_u32 s36, s36, s37
    s_add_u32 s36, s36, {QB}
    L_pq:
    ''')
    for p in range(4): a(f'buffer_load_dwordx4 v[{16+4*p}:{19+4*p}], v4, s[24:27], s36 offen offset:{1024*p} sc1')
    spin('pq')
    a('s_waitcnt vmcnt(0)')
    chk(list(range(16, 32)), 32)
    a('s_cbranch_vccnz L_pq')
    for r in range(4):
        a(f'v_add_f32 v{16+r}, v{16+r}, v{20+r}'); a(f'v_add_f32 v{24+r}, v{24+r}, v{28+r}')
    for r in range(4): a(f'v_add_f32 v{16+r}, v{16+r}, v{24+r}')
    a(f'''
    v_cvt_pk_bf16_f32 v16, v16, v17
    v_cvt_pk_bf16_f32 v17, v18, v19
    ds_write_b64 v3, v[16:17]
    s_waitcnt lgkmcnt(0)
    ds_write_b32 v13, v61 offset:8
    ''')
    stamp(3)
    a('L_cons:')
    a(f'''
    s_cmp_ge_u32 s3, s32
    s_cbranch_scc1 L_fin
    s_setprio 0
    v_lshrrev_b32 v3, 3, v0
    v_and_b32 v4, 6, v3
    v_and_b32 v5, 7, v0
    v_xor_b32 v4, v4, v5
    v_lshlrev_b32 v4, 4, v4
    v_mul_u32_u24 v3, 1152, v3
    v_add_u32 v3, v3, v4
    v_lshrrev_b32 v4, 4, v0
    v_lshlrev_b32 v4, 6, v4
    v_and_b32 v5, 3, v0
    v_lshl_add_u32 v4, v5, 4, v4
    v_bfe_u32 v5, v0, 2, 2
    s_lshl_b32 s36, s3, 13
    s_add_u32 s36, s36, {LL}
    s_mov_b32 m0, s36
    ''')
    traddr(8, 's36')
    a(f'''
    v_lshlrev_b32 v7, 2, v0
    s_lshl_b32 s37, s3, 10
    s_add_u32 s37, s37, {LP}
    v_add_u32 v7, s37, v7
    s_lshl_b32 s37, s30, 2
    s_mul_i32 s38, s34, 6
    s_cmp_eq_u32 s32, 4
    s_cselect_b32 s37, s37, s38
    s_cselect_b32 s48, s12, s18
    s_cselect_b32 s49, s13, s19
    s_mov_b32 s50, {4608*1152}
    s_cselect_b32 s50, {4096*1152}, s50
    s_mov_b32 s51, 0x20000
    s_add_u32 s37, s37, s3
    s_mul_i32 s38, s37, {64*1152}
    s_lshl_b32 s39, s33, 7
    s_add_u32 s38, s38, s39
    s_mov_b32 s59, 0
    s_cmp_eq_u32 s32, 4
    s_cbranch_scc1 L_consO
    ''')
    def dma():
        for i in range(8):
            a('buffer_load_dwordx4 v3, s[48:51], s38 offen nt lds')
            if i < 7:
                a('s_add_u32 m0, m0, 1024'); a(f's_add_u32 s38, s38, {8*1152}')
    def trs():
        for hh in range(2):
            for u in range(4):
                for tt in range(2):
                    r = 64 + 16*hh + 4*u + 2*tt
                    a(f'ds_read_b64_tr_b16 v[{r}:{r+1}], v{8+u} offset:{2048*(2*hh+tt)}')
            if hh == 0: pass
    a(f'''
    v_lshl_add_u32 v4, v5, 8, v4
    s_mul_i32 s37, s37, 3072
    s_add_u32 s37, s37, {HB}
    L_ph:
    ''')
    for p in range(3): a(f'buffer_load_dwordx4 v[{16+4*p}:{19+4*p}], v4, s[24:27], s37 offen offset:{1024*p} sc1')
    a('s_cmp_lg_u32 s59, 0'); a('s_cbranch_scc1 L_ph2')
    dma()
    stamp(4)
    a('s_barrier'); a('s_waitcnt vmcnt(8)'); a('s_branch L_ph3')
    a('L_ph2:'); a('s_waitcnt vmcnt(0)'); a('L_ph3:')
    spin('ph')
    chk(list(range(16, 28)), 32)
    a('s_cbranch_vccnz L_ph')
    for r in range(4): a(f'v_add_f32 v{16+r}, v{16+r}, v{20+r}')
    for r in range(4): a(f'v_add_f32 v{16+r}, v{16+r}, v{24+r}')
    for r in range(4): a(f'v_cvt_pk_bf16_f32 v{16+r}, 0, v{16+r}')
    for r in range(4): a(f'v_mul_f32 v{20+r}, 0xbfb8aa3b, v{16+r}')
    for r in range(4): a(f'v_exp_f32 v{20+r}, v{20+r}')
    for r in range(4): a(f'v_add_f32 v{20+r}, 1.0, v{20+r}')
    for r in range(4): a(f'v_rcp_f32 v{20+r}, v{20+r}')
    for r in range(4): a(f'v_mul_f32 v{16+r}, v{16+r}, v{20+r}')
    a('s_waitcnt vmcnt(0)')
    trs()
    a('s_branch L_mm')
    a('L_consO:')
    dma()
    stamp(4)
    a(f'''
    v_lshl_add_u32 v4, v5, 12, v4
    v_and_b32 v5, 15, v0
    v_lshlrev_b32 v5, 4, v5
    s_lshl_b32 s37, s30, 14
    s_lshl_b32 s39, s3, 8
    s_add_u32 s37, s37, s39
    s_add_u32 s37, s37, {OB}
    s_lshl_b32 s38, s30, 9
    s_lshr_b32 s39, s3, 1
    s_lshl_b32 s39, s39, 8
    s_add_u32 s38, s38, s39
    s_add_u32 s38, s38, {SB}
    s_barrier
    s_waitcnt vmcnt(0)
    ''')
    trs()
    a('L_po:')
    a('buffer_load_dwordx4 v[32:35], v5, s[24:27], s38 offen sc1')
    for p in range(4): a(f'buffer_load_dwordx4 v[{16+4*p}:{19+4*p}], v4, s[24:27], s37 offen offset:{1024*p} sc1')
    spin('po')
    a('s_waitcnt vmcnt(0)')
    chk(list(range(16, 36)), 36)
    a('s_cbranch_vccnz L_po')
    a(f'''
    v_max_f32_dpp v36, v32, v32 quad_perm:[1,0,3,2] {DPPF}
    v_max_f32_dpp v36, v36, v36 quad_perm:[2,3,0,1] {DPPF}
    v_sub_f32 v36, v32, v36
    v_mul_f32 v36, s57, v36
    v_exp_f32 v36, v36
    v_mul_f32 v37, v36, v33
    v_add_f32_dpp v37, v37, v37 quad_perm:[1,0,3,2] {DPPF}
    v_add_f32_dpp v37, v37, v37 quad_perm:[2,3,0,1] {DPPF}
    v_rcp_f32 v37, v37
    v_mul_f32 v36, v36, v37
    ''')
    for r in range(4): a(f'v_mul_f32_dpp v{16+r}, v36, v{16+r} quad_perm:[0,0,0,0] {DPPF}')
    for s in (1, 2, 3):
        for r in range(4): a(f'v_fmac_f32_dpp v{16+r}, v36, v{16+4*s+r} quad_perm:[{s},{s},{s},{s}] {DPPF}')
    a('L_mm:')
    stamp(5)
    a('v_cvt_pk_bf16_f32 v16, v16, v17'); a('v_cvt_pk_bf16_f32 v17, v18, v19')
    for tt in range(4):
        for k in range(2): a(f'v_mov_b32_dpp v{20+2*tt+k}, v{16+k} quad_perm:[{tt},{tt},{tt},{tt}] {DPPF}')
    a('s_waitcnt lgkmcnt(0)')
    for hh in range(2):
        for u in range(4):
            r = 64 + 16*hh + 4*u
            c = '0' if hh == 0 else f'v[{40+4*u}:{43+4*u}]'
            a(f'v_mfma_f32_16x16x32_bf16 v[{40+4*u}:{43+4*u}], v[{20+4*hh}:{23+4*hh}], v[{r}:{r+3}], {c}')
    a('''
    ds_write2st64_b32 v7, v40, v44 offset0:0 offset1:1
    ds_write2st64_b32 v7, v48, v52 offset0:2 offset1:3
    s_waitcnt lgkmcnt(0)
    ''')
    stamp(6)
    a('s_barrier')
    a('L_fin:')
    if diag:
        stamp(7)
        a(f'''
        s_waitcnt lgkmcnt(0)
        s_cmp_lt_u32 s3, {diag[0]}
        s_cbranch_scc1 L_exit
        s_cmp_gt_u32 s3, {diag[1]}
        s_cbranch_scc1 L_exit
        s_cmp_eq_u32 s32, 0
        s_cbranch_scc1 L_exit
        s_cmp_eq_u32 s{64+2*diag[2]}, 0
        s_cbranch_scc1 L_exit
        s_add_u32 s36, s{64+2*diag[2]}, 4000
        L_hold:
        s_memrealtime s[38:39]
        s_waitcnt lgkmcnt(0)
        s_sub_u32 s37, s38, s36
        s_cmp_lt_i32 s37, 0
        s_cbranch_scc1 L_hold
        ''')
    if stamps:
        stamp(7)
        a(f'''
        s_waitcnt lgkmcnt(0)
        s_mul_i32 s36, s29, 12
        s_add_u32 s36, s36, s3
        s_lshl_b32 s36, s36, 5
        s_add_u32 s36, s36, {STAMP}
        s_mov_b64 exec, 1
        v_mov_b32 v1, 0
        ''')
        for i in range(8): a(f'v_mov_b32 v{8+i}, s{64+2*i}')
        a('buffer_store_dwordx4 v[8:11], v1, s[24:27], s36 offen')
        a('buffer_store_dwordx4 v[12:15], v1, s[24:27], s36 offen offset:16')
    a('L_exit:')
    a('s_endpgm')
    a(f'''
    .section .rodata,"a"
    .p2align 6
    .amdhsa_kernel {NAME}_kernel
    .amdhsa_next_free_vgpr {vg}
    .amdhsa_next_free_sgpr 96
    .amdhsa_accum_offset {vg}
    .amdhsa_group_segment_fixed_size 0
    .amdhsa_kernarg_size 88
    .amdhsa_user_sgpr_count 2
    .amdhsa_user_sgpr_kernarg_segment_ptr 1
    .amdhsa_system_sgpr_workgroup_id_x 1
    .amdhsa_float_denorm_mode_32 3
    .end_amdhsa_kernel
    ''')
    n = a.pad(verbose=('-v' in sys.argv))
    return a.text()

if __name__ == '__main__':
    open('k1.s', 'w').write(gen())
    open('k1_st.s', 'w').write(gen(stamps=1))
    open('k1f.s', 'w').write(gen(opol=''))
    open('k1f_st.s', 'w').write(gen(stamps=1, opol=''))
    open('d_start.s', 'w').write(gen(diag=(0, 0, 0)))
    open('d_x.s', 'w').write(gen(diag=(0, 3, 1)))
    open('d_inp.s', 'w').write(gen(diag=(0, 3, 2)))
    open('d_q.s', 'w').write(gen(diag=(2, 2, 3)))
    open('d_pv.s', 'w').write(gen(diag=(8, 11, 4)))
    open('d_end.s', 'w').write(gen(diag=(7, 11, 7)))
```
